```python
import torch

def _softmax(x, axis=-1):
    return torch.softmax(x, dim=axis)
def _gelu(x):
    return torch.nn.functional.gelu(x, approximate="tanh")
def _silu(x):
    return torch.nn.functional.silu(x)
def _sigmoid(x):
    return torch.sigmoid(x)
def _layernorm(x, axis=-1, eps=1e-5):
    m = x.mean(dim=axis, keepdim=True)
    v = x.var(dim=axis, keepdim=True, unbiased=False)
    return (x - m) / torch.sqrt(v + eps)
def _scatter_add(tgt, idx, src, axis=0):
    return tgt.clone().index_add_(axis, idx, src)
def _segment_sum(src, seg, n):
    out = torch.zeros((n,) + src.shape[1:], dtype=src.dtype)
    return out.index_add_(0, seg, src)
def _pad(x, pw):
    flat = tuple(v for pair in reversed(pw) for v in pair)
    return torch.nn.functional.pad(x, flat)

kernel_name = 'sequential_preLN__sliding_local_dilated__glu_gated_glu__prompt'

def setup_inputs():

    _w = (lambda a: (lambda t: t.to(torch.bfloat16) if t.is_floating_point() else t)(torch.as_tensor(a)))
    def _A_setup():
        B, S, D = 1, 2048, 640
        return {
            "x": _w((lambda *s: torch.randn(*s, dtype=torch.bfloat16) * 0.05)(B, S, D)),
            "wqkv": _w((lambda *s: torch.randn(*s, dtype=torch.bfloat16) * 0.05)(D, 3 * D)),
            "wo": _w((lambda *s: torch.randn(*s, dtype=torch.bfloat16) * 0.05)(D, D)),
        }
    _A_in = _A_setup()

    def _B_setup():
        B, S, D, F = 1, 2048, 640, 1536
        return {
            "x": _w((lambda *s: torch.randn(*s, dtype=torch.bfloat16) * 0.05)(B, S, D)),
            "w_gate": _w((lambda *s: torch.randn(*s, dtype=torch.bfloat16) * 0.05)(D, F)),
            "w_up": _w((lambda *s: torch.randn(*s, dtype=torch.bfloat16) * 0.05)(D, F)),
            "w_down": _w((lambda *s: torch.randn(*s, dtype=torch.bfloat16) * 0.05)(F, D)),
        }
    _B_in = _B_setup()

    return {
        "A_x": _A_in["x"],
        "A_wqkv": _A_in["wqkv"],
        "A_wo": _A_in["wo"],
        "B_x": _B_in["x"],
        "B_w_gate": _B_in["w_gate"],
        "B_w_up": _B_in["w_up"],
        "B_w_down": _B_in["w_down"],
    }

def reference(A_x, A_wqkv, A_wo, B_x, B_w_gate, B_w_up, B_w_down):
    def _A_ref(x, wqkv, wo):
        B, S, D = x.shape
        H = 32; Dh = D // H
        W, dil = 8, 2
        qkv = (lambda x, *d: x.permute(*d))((x @ wqkv).reshape(B, S, 3, H, Dh), 2, 0, 3, 1, 4)
        q, k, v = qkv[0], qkv[1], qkv[2]
        scale = Dh ** -0.5
        pos = torch.arange(S)
        off = torch.arange(W) * dil
        idx = pos[:, None] - off[None, :]
        mask = idx >= 0
        idx_c = torch.where(mask, idx, 0).reshape(-1)
        kg = k[:, :, idx_c, :].reshape(B, H, S, W, Dh)
        vg = v[:, :, idx_c, :].reshape(B, H, S, W, Dh)
        logits = torch.einsum("bhsd,bhswd->bhsw", q, kg) * scale
        logits = torch.where(mask[None, None, :, :], logits, -1e9)
        attn = _softmax(logits, axis=-1)
        o = torch.einsum("bhsw,bhswd->bhsd", attn, vg)
        return (lambda x, *d: x.permute(*d))(o, 0, 2, 1, 3).reshape(B, S, D) @ wo

    def _B_ref(x, w_gate, w_up, w_down):
        g = torch.einsum("bsd,df->bsf", x, w_gate)
        u = torch.einsum("bsd,df->bsf", x, w_up)
        h = _sigmoid(g) * u
        return torch.einsum("bsf,fd->bsd", h, w_down)

    x = A_x
    h = x + _A_ref(_layernorm(x, axis=-1), A_wqkv, A_wo)
    h2 = h + _B_ref(_layernorm(h, axis=-1), B_w_gate, B_w_up, B_w_down)
    return h2
```

```python
import re, subprocess

SOPP = ("s_waitcnt", "s_barrier", "s_nop", "s_cbranch", "s_branch", "s_setprio", "s_sleep", "s_endpgm", "s_sethalt", "s_sendmsg", "s_trap")
INLINE_F = {"0.5", "-0.5", "1.0", "-1.0", "2.0", "-2.0", "4.0", "-4.0", "0.15915494", "0.159154943"}

def is_literal(tok):
    tok = tok.strip()
    if tok in INLINE_F: return False
    m = re.fullmatch(r"-?(0x[0-9a-fA-F]+|\d+)", tok)
    if m:
        v = int(tok, 0)
        return not (-16 <= v <= 64)
    if re.fullmatch(r"-?\d+\.\d*(e[-+]?\d+)?", tok): return True
    return False

VOP3_ONLY = ("v_mfma", "v_fma_f32", "v_mad_", "v_add3", "v_lshl_add", "v_add_lshl", "v_lshl_or", "v_and_or", "v_or3", "v_bfe", "v_bfi", "v_perm_b32",
             "v_mul_lo", "v_mul_hi", "v_min3", "v_max3", "v_med3", "v_cvt_pk_bf16", "v_pk_", "v_dot2_f32", "v_readlane", "v_writelane",
             "v_accvgpr_read", "v_accvgpr_write", "v_lshlrev_b64", "v_bitop3", "v_xad", "v_maximum3", "v_minimum3", "v_div_", "v_mbcnt", "v_alignbit", "v_alignbyte", "v_ldexp", "v_cvt_pk", "v_lshl_add_u64", "v_sub_i32", "v_add_i32")

def isize(line):
    s = line.split(";")[0].split("//")[0].strip()
    if not s or s.endswith(":") or s.startswith("."): return 0
    m = re.match(r"([a-z_0-9]+)\s*(.*)", s)
    op, rest = m.group(1), m.group(2)
    ops = [t.strip() for t in re.split(r",(?![^\[]*\])", rest)] if rest else []
    if op.startswith(SOPP): return 4
    if op.startswith(("s_load", "s_memtime", "s_memrealtime", "s_buffer_load")): return 8
    if op.startswith(("ds_", "buffer_", "global_", "flat_")): return 8
    if op.startswith("s_"):
        if op.startswith(("s_movk", "s_addk", "s_mulk", "s_cmpk", "s_getreg", "s_setreg_b32", "s_getpc", "s_setpc", "s_swappc")): return 4
        toks = [t.split()[0] if t else t for t in ops]
        return 8 if any(is_literal(t) for t in toks) else 4
    if op.startswith("v_"):
        if op.endswith("_e64") or op.startswith(VOP3_ONLY): return 8
        if "_dpp" in op or "_sdwa" in op or re.search(r"\b(quad_perm|row_shr|row_shl|row_ror|row_bcast|row_newbcast|row_mirror|row_half_mirror|wave_)", s): return 8
        toks = [t.split()[0] if t else t for t in ops]
        if any(is_literal(t) for t in toks): return 8
        if op.startswith("v_cmp"):
            if toks[0] != "vcc": return 8
            if len(toks) >= 3 and not toks[2].startswith("v"): return 8
            if "abs(" in s or re.search(r",\s*-v", s): return 8
            return 4
        if op.startswith("v_cndmask"):
            if toks[-1] != "vcc": return 8
            if not toks[2].startswith("v"): return 8
            return 4
        if re.search(r"[ ,]-[vsa]\d|abs\(|\bclamp\b|\bmul:|\bdiv:|op_sel", s): return 8
        if len(toks) == 3 and not toks[2].startswith("v"): return 8
        return 4
    raise ValueError("unknown instr " + line)


class Asm:
    def __init__(self):
        self.lines = []
        self.launches = []
        self.nlab = 0
        self.off = 0
        self.track = True

    def __call__(self, s=""):
        for l in s.split("\n"):
            self.lines.append(l)
            if self.track:
                self.off += isize(l)

    def align8(self):
        if self.off % 8:
            self("s_nop 0")

    def label(self, base="L"):
        self.nlab += 1
        return "%s_%d" % (base, self.nlab)

    def begin_kernel(self, name):
        self.track = False
        self("")
        self(".text")
        self(".globl %s" % name)
        self(".p2align 8")
        self(".type %s,@function" % name)
        self("%s:" % name)
        self.track = True
        self.off = 0

    def end_kernel(self, name, vgpr=256, sgpr=102, accum=None, extra=()):
        if accum is None:
            accum = min(256, (vgpr + 3) // 4 * 4)
        self("s_endpgm")
        self.track = False
        self(".section .rodata,\"a\"")
        self(".p2align 6")
        self(".amdhsa_kernel %s" % name)
        self("  .amdhsa_next_free_vgpr %d" % vgpr)
        self("  .amdhsa_next_free_sgpr %d" % sgpr)
        self("  .amdhsa_accum_offset %d" % accum)
        self("  .amdhsa_group_segment_fixed_size 0")
        self("  .amdhsa_kernarg_size 80")
        self("  .amdhsa_user_sgpr_count 2")
        self("  .amdhsa_user_sgpr_kernarg_segment_ptr 1")
        self("  .amdhsa_system_sgpr_workgroup_id_x 1")
        for e in extra:
            self("  " + e)
        self(".end_amdhsa_kernel")

    def text(self, header=""):
        h = header
        for (name, g, b, lds) in self.launches:
            h += "; @launch kernel=%s grid=(%d,%d,%d) block=(%d,%d,%d) lds=%d\n" % (name, g[0], g[1], g[2], b[0], b[1], b[2], lds)
        h += ".amdgcn_target \"amdgcn-amd-amdhsa--gfx950\"\n"
        return h + "\n".join(self.lines) + "\n"


def check_sizes(asm_lines, co_path, kernel):
    out = subprocess.run(["llvm-objdump", "-d", "--mcpu=gfx950", co_path], capture_output=True, text=True).stdout
    rows = []
    on = False
    for l in out.split("\n"):
        if re.match(r"[0-9a-f]+ <%s>:" % re.escape(kernel), l): on = True; continue
        if on and re.match(r"[0-9a-f]+ <", l) and "_kernel>:" in l: break
        if on:
            m = re.search(r"//\s*([0-9A-F]+):\s*((?:[0-9A-F]{8}\s*)+)", l)
            if m:
                rows.append((int(m.group(1), 16), len(m.group(2).split())*4, l.strip().split("//")[0].strip()))
    return rows
```

```python
import pickle
from ag import Asm
from build import build
a = Asm(); cfg = []
def gen(name, nst, nld, lds):
    a.begin_kernel(name)
    a("s_cmp_ge_u32 s2, 256")
    a("s_cbranch_scc1 %s_done" % name)
    a("s_load_dwordx2 s[4:5], s[0:1], 0")
    a("s_load_dwordx2 s[12:13], s[0:1], 16")
    a("v_lshlrev_b32 v1, 4, v0")
    a("v_lshrrev_b32 v3, 6, v0")
    a("s_waitcnt lgkmcnt(0)")
    a("s_mov_b32 s8, s4")
    a("s_and_b32 s9, s5, 0xffff")
    a("s_mov_b32 s10, 0x10000000")
    a("s_mov_b32 s11, 0x20000")
    a("s_lshl_b32 s14, s2, 16")
    a("s_add_u32 s14, s14, 0x1000000")
    a("s_mov_b32 s15, 0")
    a("buffer_load_dwordx4 v[8:11], v1, s[8:11], s15 offen")
    a("s_waitcnt vmcnt(0)")
    a("s_barrier")
    a("s_memtime s[30:31]")
    a("s_waitcnt lgkmcnt(0)")
    for i in range(nst):
        a("buffer_store_dwordx4 v[12:15], v1, s[8:11], s14 offen sc0 sc1")
        a("s_add_u32 s14, s14, 4096")
    a("s_mov_b32 m0, 0")
    for i in range(nld):
        if lds: a("buffer_load_dwordx4 v1, s[8:11], s15 offen lds")
        else: a("buffer_load_dwordx4 v[16:19], v1, s[8:11], s15 offen")
    a("s_waitcnt vmcnt(%d)" % nld)
    a("s_memtime s[32:33]")
    a("s_waitcnt vmcnt(0)")
    a("s_memtime s[34:35]")
    a("s_waitcnt lgkmcnt(0)")
    a("s_sub_u32 s32, s32, s30")
    a("s_sub_u32 s34, s34, s30")
    a("v_mov_b32 v4, s32")
    a("v_mov_b32 v5, s34")
    a("s_lshl_b32 s3, s2, 5")
    a("v_lshlrev_b32 v6, 3, v3")
    a("v_add_u32 v6, s3, v6")
    a("global_store_dwordx2 v6, v[4:5], s[12:13]")
    a("%s_done:" % name)
    a.end_kernel(name, vgpr=64, sgpr=64)
    a.launches.append((name, (256,1,1), (256,1,1), 131072)); cfg.append(name)
for nst, nld, lds in ((0,4,0),(0,4,1),(3,0,0),(3,1,0),(3,4,0),(3,4,1),(1,4,0),(1,1,1)):
    gen("k_st%d_ld%d_lds%d_kernel" % (nst, nld, lds), nst, nld, lds)
build(a.text(), "mb13", None)
pickle.dump(cfg, open("mb13.pkl", "wb"))
```

```python
import pickle
from ag import Asm
from build import build
a = Asm(); cfg = []
tests = {
 "vfma": lambda i: "v_fma_f32 v%d, v21, v22, v23" % (24 + i % 8),
 "vmul_e32": lambda i: "v_mul_f32 v%d, v21, v22" % (24 + i % 8),
 "pkfma": lambda i: "v_pk_fma_f32 v[%d:%d], v[20:21], v[22:23], v[18:19]" % (24 + 2*(i % 4), 25 + 2*(i % 4)),
 "pkmul": lambda i: "v_pk_mul_f32 v[%d:%d], v[20:21], v[22:23]" % (24 + 2*(i % 4), 25 + 2*(i % 4)),
 "pkadd": lambda i: "v_pk_add_f32 v[%d:%d], v[20:21], v[22:23]" % (24 + 2*(i % 4), 25 + 2*(i % 4)),
 "exp": lambda i: "v_exp_f32 v%d, v21" % (24 + i % 8),
 "rcp": lambda i: "v_rcp_f32 v%d, v21" % (24 + i % 8),
 "cvtpk": lambda i: "v_cvt_pk_bf16_f32 v%d, v21, v22" % (24 + i % 8),
 "max3": lambda i: "v_max3_f32 v%d, v21, v22, v23" % (24 + i % 8),
 "dot2c": lambda i: "v_dot2c_f32_bf16 v%d, v21, v22" % (24 + i % 8),
 "sadd_dep": lambda i: "s_add_u32 s20, s20, s21",
 "sadd_ind": lambda i: "s_add_u32 s%d, s21, s22" % (24 + i % 8),
 "smul": lambda i: "s_mul_i32 s%d, s21, s22" % (24 + i % 8),
 "smov_lit": lambda i: "s_mov_b32 s%d, 0x12345" % (24 + i % 8),
 "mix_sv": lambda i: ("s_add_u32 s%d, s21, s22" % (24 + i % 8)) if i % 2 else ("v_mul_f32 v%d, v21, v22" % (24 + i % 8)),
 "mix_exp_mul": lambda i: ("v_exp_f32 v%d, v21" % (24 + i % 8)) if i % 2 else ("v_mul_f32 v%d, v21, v22" % (32 + i % 8)),
 "vdep": lambda i: "v_mul_f32 v24, v24, v22",
 "perm32": lambda i: "v_permlane32_swap_b32 v%d, v%d" % (24 + 2*(i % 4), 25 + 2*(i % 4)),
 "dpp": lambda i: "v_add_f32_dpp v%d, v21, v22 row_ror:4 row_mask:0xf bank_mask:0xf" % (24 + i % 8),
 "vmov": lambda i: "v_mov_b32 v%d, v21" % (24 + i % 8),
 "accw": lambda i: "v_accvgpr_write_b32 a%d, v21" % (i % 8),
 "cndmask_s": lambda i: "v_cndmask_b32 v%d, v21, v22, s[30:31]" % (24 + i % 8),
 "snop": lambda i: "s_nop 0",
}
N = 512
for nm, f in tests.items():
    name = "k_%s_kernel" % nm
    a.begin_kernel(name)
    a("s_cmp_ge_u32 s2, 256")
    a("s_cbranch_scc1 %s_done" % name)
    a("s_load_dwordx2 s[12:13], s[0:1], 16")
    a("v_lshrrev_b32 v3, 6, v0")
    a("s_mov_b32 s40, 2")
    a("s_waitcnt lgkmcnt(0)")
    a("%s_l:" % name)
    a.align8()
    a("s_memtime s[32:33]")
    a("s_waitcnt lgkmcnt(0)")
    a.align8()
    for i in range(N): a(f(i))
    a("s_memtime s[34:35]")
    a("s_waitcnt lgkmcnt(0)")
    a("s_sub_u32 s40, s40, 1")
    a("s_cmp_lg_u32 s40, 0")
    a("s_cbranch_scc1 %s_l" % name)
    a("s_sub_u32 s34, s34, s32")
    a("v_mov_b32 v4, s34")
    a("s_lshl_b32 s3, s2, 4")
    a("v_lshlrev_b32 v6, 2, v3")
    a("v_add_u32 v6, s3, v6")
    a("global_store_dword v6, v4, s[12:13]")
    a("%s_done:" % name)
    a.end_kernel(name, vgpr=512, sgpr=64, accum=256)
    a.launches.append((name, (256,1,1), (256,1,1), 131072)); cfg.append(name)
build(a.text(), "mb14", None)
pickle.dump((cfg, N), open("mb14.pkl", "wb"))
```
